```python
import torch

def _softmax(x, axis=-1):
    return torch.softmax(x, dim=axis)
def _gelu(x):
    return torch.nn.functional.gelu(x, approximate="tanh")
def _silu(x):
    return torch.nn.functional.silu(x)
def _sigmoid(x):
    return torch.sigmoid(x)
def _layernorm(x, axis=-1, eps=1e-5):
    m = x.mean(dim=axis, keepdim=True)
    v = x.var(dim=axis, keepdim=True, unbiased=False)
    return (x - m) / torch.sqrt(v + eps)
def _scatter_add(tgt, idx, src, axis=0):
    return tgt.clone().index_add_(axis, idx, src)
def _segment_sum(src, seg, n):
    out = torch.zeros((n,) + src.shape[1:], dtype=src.dtype)
    return out.index_add_(0, seg, src)
def _pad(x, pw):
    flat = tuple(v for pair in reversed(pw) for v in pair)
    return torch.nn.functional.pad(x, flat)

kernel_name = 'standalone__batchnorm__sampling'

def setup_inputs():

    _w = (lambda a: (lambda t: t.to(torch.bfloat16) if t.is_floating_point() else t)(torch.as_tensor(a)))
    B, S, C = 1024, 16, 448
    K = 3
    return {
        "x": _w((lambda *s: torch.randn(*s, dtype=torch.bfloat16) * 0.05)(B, S, C)),
        "w": _w((lambda *s: torch.randn(*s, dtype=torch.bfloat16) * 0.05)(K, C, C) * (1.0 / (K * C) ** 0.5)),
        "mean": _w((lambda *s: torch.randn(*s, dtype=torch.bfloat16) * 0.05)(C) * 0.1),
        "var": _w(torch.abs((lambda *s: torch.randn(*s, dtype=torch.bfloat16) * 0.05)(C)) + 0.5),
        "g": _w((lambda *s: torch.randn(*s, dtype=torch.bfloat16) * 0.05)(C) + 1.0),
        "b": _w((lambda *s: torch.randn(*s, dtype=torch.bfloat16) * 0.05)(C) * 0.1),
    }

def reference(x, w, mean, var, g, b):
    K = 3
    P = K // 2
    S = x.shape[1]
    xp = _pad(x, ((0, 0), (P, P), (0, 0)))
    y = sum(torch.einsum('bsc,cd->bsd', xp[:, k:k + S, :], w[k]) for k in range(K))
    inv_std = 1.0 / torch.sqrt(var + 1e-5)
    y = (y - mean) * (g * inv_std) + b
    return _silu(y)
```

```python
HEADER = """; @launch grid=({grid},1,1) block=({block},1,1) lds={lds}
.amdgcn_target "amdgcn-amd-amdhsa--gfx950"
.text
.globl standalone__batchnorm__sampling_kernel
.p2align 8
.type standalone__batchnorm__sampling_kernel,@function
standalone__batchnorm__sampling_kernel:
"""
FOOTER = """
s_endpgm
.section .rodata,"a"
.p2align 6
.amdhsa_kernel standalone__batchnorm__sampling_kernel
  .amdhsa_next_free_vgpr {nvgpr}
  .amdhsa_next_free_sgpr 102
  .amdhsa_accum_offset {accum}
  .amdhsa_group_segment_fixed_size 0
  .amdhsa_kernarg_size 72
  .amdhsa_user_sgpr_count 2
  .amdhsa_user_sgpr_kernarg_segment_ptr 1
  .amdhsa_system_sgpr_workgroup_id_x 1
.end_amdhsa_kernel
"""
class Asm:
    def __init__(self): self.l=[]
    def __call__(self, s):
        for line in s.strip("\n").split("\n"): self.l.append("    "+line.strip() if not line.strip().endswith(":") else line.strip())
    def text(self): return "\n".join(self.l)+"\n"
def wrap(body, grid=256, block=256, lds=163840, nvgpr=512, accum=256):
    return HEADER.format(grid=grid, block=block, lds=lds)+body+FOOTER.format(nvgpr=nvgpr, accum=accum)
```

```python
import sys
sys.path.insert(0,"exp")
from common import Asm
HDR=open("standalone__batchnorm__sampling.s.ref").read().split("; Override launch")[0]
def wrap(body, grid, block, lds, nvgpr, accum):
    return HDR+f"""; @launch grid=({grid},1,1) block=({block},1,1) lds={lds}
.amdgcn_target "amdgcn-amd-amdhsa--gfx950"
.text
.globl standalone__batchnorm__sampling_kernel
.p2align 8
.type standalone__batchnorm__sampling_kernel,@function
standalone__batchnorm__sampling_kernel:
{body}
    s_endpgm
.section .rodata,"a"
.p2align 6
.amdhsa_kernel standalone__batchnorm__sampling_kernel
  .amdhsa_next_free_vgpr {nvgpr}
  .amdhsa_next_free_sgpr 102
  .amdhsa_accum_offset {accum}
  .amdhsa_group_segment_fixed_size 0
  .amdhsa_kernarg_size 72
  .amdhsa_user_sgpr_count 2
  .amdhsa_user_sgpr_kernarg_segment_ptr 1
  .amdhsa_system_sgpr_workgroup_id_x 1
.end_amdhsa_kernel
"""
XB=14680064; WB=1204224
def gen(xaux="", saux="", round_bn=True):
    a=Asm()
    a(f"""
    s_load_dwordx8 s[4:11], s[0:1], 0
    s_load_dwordx4 s[12:15], s[0:1], 32
    s_load_dwordx2 s[16:17], s[0:1], 48
    s_cmp_ge_u32 s2, 256
    s_cbranch_scc1 L_end
    s_and_b32 s40, s2, 7          ; xcd
    s_lshr_b32 s41, s2, 3         ; idx
    s_lshr_b32 s42, s40, 1        ; pair
    s_and_b32 s43, s40, 1         ; odd
    s_mul_i32 s44, s41, 37
    s_lshr_b32 s44, s44, 8        ; idx/7
    s_mul_i32 s45, s44, 7
    s_sub_u32 s45, s41, s45       ; idx%7 = g
    s_lshl_b32 s46, s43, 2
    s_add_u32 s47, s46, s44
    s_mul_i32 s47, s47, 29
    s_cmp_ge_u32 s41, 28
    s_cselect_b32 s48, s46, 0
    s_add_u32 s45, s45, s48
    s_cmp_ge_u32 s41, 28
    s_cselect_b32 s47, 226, s47
    s_cmp_ge_u32 s45, 7
    s_cbranch_scc1 L_end
    s_lshl_b32 s42, s42, 8
    s_add_u32 s47, s47, s42
    v_lshrrev_b32 v1, 6, v0
    v_and_b32 v2, 63, v0          ; lane
    s_nop 0
    v_readfirstlane_b32 s49, v1
    s_lshl_b32 s50, s45, 7        ; g*128 bytes
    s_mul_i32 s51, s47, 14336
    v_lshrrev_b32 v3, 3, v2       ; r
    v_and_b32 v8, 7, v2           ; p'
    v_and_b32 v9, 6, v3
    v_xor_b32 v9, v9, v8          ; piece
    v_mul_u32_u24 v4, 896, v3
    v_lshl_add_u32 v4, v9, 4, v4
    s_mul_i32 s52, s49, 7168
    s_add_u32 s53, s52, 4096
    v_add_u32 v4, s53, v4         ; + bias + 7168*w
    v_subrev_u32 v5, 896, v4
    v_subrev_u32 v6, 1792, v4
    v_subrev_u32 v7, 2688, v4
    v_and_b32 v9, 2, v3
    s_and_b32 s53, s49, 1
    s_lshl_b32 s53, s53, 2
    v_or_b32 v9, s53, v9
    v_xor_b32 v9, v9, v8
    v_mul_u32_u24 v10, 896, v3
    v_lshl_add_u32 v10, v9, 4, v10
    v_add_u32 v10, s52, v10
    v_add_u32 v10, s50, v10
    v_and_b32 v16, 15, v2         ; s
    v_lshrrev_b32 v17, 4, v2      ; q
    v_and_b32 v18, 7, v16         ; r
    v_lshrrev_b32 v19, 3, v16     ; s>>3
    v_and_b32 v9, 6, v18
    v_xor_b32 v9, v9, v17
    v_mul_u32_u24 v12, 7168, v19
    v_lshl_add_u32 v12, v18, 7, v12
    v_lshl_add_u32 v12, v9, 4, v12
    v_xor_b32 v13, 64, v12
    v_add_u32 v14, 57344, v12
    v_add_u32 v15, 57344, v13
    v_lshrrev_b32 v18, 2, v16     ; tt>>2
    v_and_b32 v19, 3, v16         ; c'
    v_lshrrev_b32 v9, 1, v19
    s_lshl_b32 s53, s49, 1
    v_add_u32 v9, s53, v9         ; piece = 2w + (c'>>1)
    v_and_b32 v20, 2, v18         ; ((r>>1)&1)*2
    v_and_b32 v21, 1, v17
    v_lshl_or_b32 v20, v21, 2, v20 ; f
    v_xor_b32 v9, v9, v20
    v_lshlrev_b32 v11, 10, v17
    v_lshl_add_u32 v11, v18, 7, v11
    v_lshl_add_u32 v11, v9, 4, v11
    v_and_b32 v19, 1, v19
    v_lshl_add_u32 v11, v19, 3, v11
    v_add_u32 v11, 114688, v11
    v_lshrrev_b32 v9, 1, v17
    v_add_u32 v9, s53, v9
    v_and_b32 v18, 7, v16
    v_xor_b32 v9, v9, v18
    v_lshlrev_b32 v22, 7, v16
    v_lshl_add_u32 v22, v9, 4, v22
    v_lshl_add_u32 v22, v21, 3, v22
    v_add_u32 v22, 114688, v22
    v_lshlrev_b32 v23, 4, v0
    v_add_u32 v23, 114688, v23
    v_xor_b32 v9, v8, v3
    v_mul_u32_u24 v24, 896, v3
    v_lshl_add_u32 v24, v9, 4, v24
    v_add_u32 v24, s52, v24
    v_add_u32 v24, s50, v24
    s_lshl_b32 s53, s49, 5
    s_add_u32 s53, s53, s50
    v_lshlrev_b32 v25, 3, v17
    v_add_u32 v25, s53, v25
    s_waitcnt lgkmcnt(0)
    s_sub_u32 s20, s4, 4096
    s_subb_u32 s21, s5, 0
    s_mov_b32 s22, {XB+4096}
    s_mov_b32 s23, 0x20000
    s_mov_b32 s24, s6
    s_mov_b32 s25, s7
    s_mov_b32 s26, {WB}
    s_mov_b32 s27, 0x20000
    s_mov_b32 s28, s16
    s_mov_b32 s29, s17
    s_mov_b32 s30, {XB}
    s_mov_b32 s31, 0x20000
    s_mov_b32 s34, 896
    s_mov_b32 s35, 0x20000
    """)
    for i,(lo) in enumerate([8,10,12,14]):
        a(f"""
        s_mov_b32 s32, s{lo}
        s_mov_b32 s33, s{lo+1}
        buffer_load_dwordx2 v[{26+2*i}:{27+2*i}], v25, s[32:35], 0 offen
        s_nop 1
        """)
    def xdma(slot, soff):
        a(f"s_add_u32 m0, s52, {slot*28672}")
        a("s_nop 0")
        for j in range(4): a(f"buffer_load_dwordx4 v{4+j}, s[20:23], {soff} offen offset:{1024*j} {xaux} lds")
        a(f"s_add_u32 m0, s52, {slot*28672+4096}")
        a(f"s_add_u32 s55, {soff}, 512")
        for j in range(3): a(f"buffer_load_dwordx4 v{4+j}, s[20:23], s55 offen offset:{1024*j} {xaux} lds")
    a("s_mov_b32 s54, s51")
    for p in range(3):
        xdma(p,"s54"); a("s_add_u32 s54, s54, 28672")
    a("s_waitcnt vmcnt(21)")
    for i in range(4):
        for h in range(2):
            a(f"v_lshlrev_b32 v{40+4*i+2*h}, 16, v{26+2*i+h}")
            a(f"v_and_b32 v{41+4*i+2*h}, 0xffff0000, v{26+2*i+h}")
    def rnd(r):
        if round_bn:
            a(f"v_cvt_pk_bf16_f32 v{r}, v{r}, v{r}\nv_and_b32 v{r}, 0xffff0000, v{r}")
    a("s_mov_b32 s56, 0x3fb8aa3b")
    for r in range(4):
        a(f"v_add_f32 v{44+r}, 0x3727c5ac, v{44+r}"); rnd(44+r)
        a(f"v_sqrt_f32 v{44+r}, v{44+r}\ns_nop 0"); rnd(44+r)
        a(f"v_rcp_f32 v{44+r}, v{44+r}\ns_nop 0"); rnd(44+r)
        a(f"v_mul_f32 v{44+r}, v{48+r}, v{44+r}"); rnd(44+r)
        a(f"v_fma_f32 v{52+r}, -v{40+r}, v{44+r}, v{52+r}")
        a(f"v_mul_f32 v{32+r}, s56, v{44+r}")
        a(f"v_mul_f32 v{36+r}, s56, v{52+r}")
    a("v_mov_b32 v31, s56")
    a("s_lshl_b32 s57, s49, 10")
    def wdma(ch):
        st=114688+(ch&1)*24576
        for tap in range(3):
            for hb in range(2):
                a(f"s_add_u32 m0, s57, {st+tap*8192+hb*4096}")
                a(f"s_mov_b32 s58, {tap*401408+ch*57344+hb*28672}")
                a(f"buffer_load_dwordx4 v10, s[24:27], s58 offen lds")
    wdma(0)
    for ch in range(7):
        if ch<6:
            wdma(ch+1); a("s_waitcnt vmcnt(6)")
        else: a("s_waitcnt vmcnt(0)")
        a("s_barrier")
        for tap in range(3):
            for kk in range(2):
                fr=tap*14+2*ch+kk
                for u in range(2):
                    a(f"ds_read_b64_tr_b16 a[{4*fr+2*u}:{4*fr+2*u+1}], v11 offset:{(ch&1)*24576+tap*8192+kk*4096+u*512}")
        a("s_waitcnt lgkmcnt(0)\ns_barrier")
    a("s_mov_b32 s59, s51")
    NP=15
    for p in range(NP):
        slot=p%4
        if p+3<NP:
            xdma((p+3)%4,"s54"); a("s_add_u32 s54, s54, 28672")
        for b in range(2):
            ad=(12,13) if slot<2 else (14,15)
            base=(slot%2)*28672+14336*b
            for jj in range(14):
                a(f"ds_read_b128 v[{64+4*jj}:{67+4*jj}], v{ad[jj&1]} offset:{base+1024*(jj>>1)}")
            a("s_waitcnt lgkmcnt(0)")
            for jj in range(14):
                for tap in range(3):
                    d=40+4*tap; fr=tap*14+jj
                    c="0" if jj==0 else f"v[{d}:{d+3}]"
                    a(f"v_mfma_f32_16x16x32_bf16 v[{d}:{d+3}], a[{4*fr}:{4*fr+3}], v[{64+4*jj}:{67+4*jj}], {c}")
            a("s_nop 7\ns_nop 1")
            for r in range(4): a(f"v_fma_f32 v{52+r}, v{44+r}, v{32+r}, v{36+r}")
            for r in range(4): a(f"v_fmac_f32_dpp v{52+r}, v{40+r}, v{32+r} row_shr:1 row_mask:0xf bank_mask:0xf bound_ctrl:0")
            for r in range(4): a(f"v_fmac_f32_dpp v{52+r}, v{48+r}, v{32+r} row_shl:1 row_mask:0xf bank_mask:0xf bound_ctrl:0")
            for r in range(4): a(f"v_exp_f32 v{56+r}, -v{52+r}")
            for r in range(4): a(f"v_fma_f32 v{56+r}, v{56+r}, v31, v31")
            for r in range(4): a(f"v_rcp_f32 v{56+r}, v{56+r}")
            for r in range(4): a(f"v_mul_f32 v{56+r}, v{56+r}, v{52+r}")
            a("v_cvt_pk_bf16_f32 v60, v56, v57\nv_cvt_pk_bf16_f32 v61, v58, v59")
            a(f"ds_write_b64 v22, v[60:61] offset:{(p&1)*4096+b*2048}")
        outstanding_after = 0
        n=0
        if p+2<NP: n+=7
        if p+3<NP: n+=7
        if p>=1: n+=1
        if p>=2: n+=1
        a(f"s_waitcnt vmcnt({n}) lgkmcnt(0)\ns_barrier")
        a(f"ds_read_b128 v[120:123], v23 offset:{(p&1)*4096}")
        a("s_waitcnt lgkmcnt(0)")
        a(f"buffer_store_dwordx4 v[120:123], v24, s[28:31], s59 offen {saux}")
        a("s_add_u32 s59, s59, 28672")
    a("s_waitcnt vmcnt(0)")
    a("L_end:")
    return wrap(a.text(), 256, 256, 163840, 512, 256)
if __name__=="__main__":
    open("v0.s","w").write(gen())
    open("v0_nt.s","w").write(gen(xaux="nt"))
    open("v0_nt_sc1.s","w").write(gen(xaux="nt",saux="sc1"))
    open("v0_sc1.s","w").write(gen(saux="sc1"))
    open("v0_nt_nt.s","w").write(gen(xaux="nt",saux="nt"))
    open("v0_nornd.s","w").write(gen(round_bn=False))
```

```python
import sys,re
REGS=[76+2*i for i in range(10)]+[4+2*i for i in range(8)]
def trace(src, ks):
    assert len(ks)<=18
    lines=src.split("\n"); out=[]; n=-1; segs=[[] for _ in range(len(ks)+1)]; cur=0
    for l in lines:
        out.append(l)
        t=l.strip()
        if t.startswith("v_mfma"):
            n+=1
            if n in ks:
                i=ks.index(n); out.append(f" s_memtime s[{REGS[i]}:{REGS[i]+1}]"); cur=i+1
        elif n>=0: segs[cur].append(t.split()[0] if t else "")
    s="\n".join(out)
    start="standalone__batchnorm__sampling_kernel:\n"
    s=s.replace(start,start+" s_memrealtime s[96:97]\n")
    t=" s_waitcnt vmcnt(0)\n s_memrealtime s[98:99]\n s_load_dwordx2 s[20:21], s[0:1], 64\n s_waitcnt lgkmcnt(0)\n s_mov_b32 s22, 0x100000\n s_mov_b32 s23, 0x20000\n"
    t+=" v_lshrrev_b32 v1, 6, v0\n s_lshl_b32 s40, s2, 2\n v_add_u32 v1, s40, v1\n v_lshlrev_b32 v1, 7, v1\n"
    for i in range(len(ks)):
        t+=f" v_mov_b32 v2, s{REGS[i]}\n buffer_store_dword v2, v1, s[20:23], 0 offen offset:{4*i}\n"
    t+=" v_mov_b32 v2, s96\n buffer_store_dword v2, v1, s[20:23], 0 offen offset:120\n v_mov_b32 v2, s98\n buffer_store_dword v2, v1, s[20:23], 0 offen offset:124\n s_waitcnt vmcnt(0)\n"
    s=s.replace(" s_endpgm\nL_sp"," s_branch L_fin\nL_sp",1)
    s=s.replace("L_end:\n",t+"L_end:\n")
    return s,segs
if __name__=="__main__":
    base=sys.argv[1]; k0=int(sys.argv[2]); step=int(sys.argv[3]); nrun=int(sys.argv[4])
    src=open(base).read(); names=[]
    import json
    meta={}
    for r in range(nrun):
        ks=[k0+step*(17*r+i) for i in range(18)]
        s,segs=trace(src,ks)
        nm=base.replace(".s",f"_tr{r}.s"); open(nm,"w").write(s); names.append(nm)
        ab={"buffer_load_dwordx4":"G","buffer_store_dwordx4":"ST","ds_write_b64":"dw","s_barrier":"BAR","ds_add_u32":"ARR","s_cbranch_vccnz":"CHK","ds_read_b128":"L","ds_read_b64_tr_b16":"Lw","s_waitcnt":"w"}
        meta[nm]=[(ks[i],"".join(ab.get(x,"")+(" " if x in ab else "") for x in segs[i+1])) for i in range(17)]
    json.dump(meta,open(base.replace(".s","_tr.json"),"w"))
    print(" ".join(names)); print(json.dumps(names+[base.replace(".s","_tr.json")]))
```
